```python
import torch

def _softmax(x, axis=-1):
    return torch.softmax(x, dim=axis)
def _gelu(x):
    return torch.nn.functional.gelu(x, approximate="tanh")
def _silu(x):
    return torch.nn.functional.silu(x)
def _sigmoid(x):
    return torch.sigmoid(x)
def _layernorm(x, axis=-1, eps=1e-5):
    m = x.mean(dim=axis, keepdim=True)
    v = x.var(dim=axis, keepdim=True, unbiased=False)
    return (x - m) / torch.sqrt(v + eps)
def _scatter_add(tgt, idx, src, axis=0):
    return tgt.clone().index_add_(axis, idx, src)
def _segment_sum(src, seg, n):
    out = torch.zeros((n,) + src.shape[1:], dtype=src.dtype)
    return out.index_add_(0, seg, src)
def _pad(x, pw):
    flat = tuple(v for pair in reversed(pw) for v in pair)
    return torch.nn.functional.pad(x, flat)

kernel_name = 'concat_heads__sliding_block_cached__sliding_block_cached__decode'

def setup_inputs():

    _w = (lambda a: (lambda t: t.to(torch.bfloat16) if t.is_floating_point() else t)(torch.as_tensor(a)))
    def _A_setup():
        B, Sq, D = 4, 1, 512
        Hq, Hkv, Sk, Dh = 32, 8, 8192, 128
        assert Hq % Hkv == 0, (Hq, Hkv)
        return {
            "x": _w((lambda *s: torch.randn(*s, dtype=torch.bfloat16) * 0.8)(B, Sq, D)),
            "k_cache": _w((lambda *s: torch.randn(*s, dtype=torch.bfloat16) * 1.6)(B, Hkv, Sk, Dh)),
            "v_cache": _w((lambda *s: torch.randn(*s, dtype=torch.bfloat16) * 0.2)(B, Hkv, Sk, Dh)),
            "wq": _w((lambda *s: torch.randn(*s, dtype=torch.bfloat16) * 1.6)(D, Hq * Dh) * (D ** -0.5)),
            "wo": _w((lambda *s: torch.randn(*s, dtype=torch.bfloat16) * 0.2)(Hq * Dh, D) * ((Hq * Dh) ** -0.5)),
        }
    _A_in = _A_setup()

    def _B_setup():
        B, Sq, D = 4, 1, 512
        Hq, Hkv, Sk, Dh = 32, 8, 8192, 128
        assert Hq % Hkv == 0, (Hq, Hkv)
        return {
            "x": _w((lambda *s: torch.randn(*s, dtype=torch.bfloat16) * 0.8)(B, Sq, D)),
            "k_cache": _w((lambda *s: torch.randn(*s, dtype=torch.bfloat16) * 1.6)(B, Hkv, Sk, Dh)),
            "v_cache": _w((lambda *s: torch.randn(*s, dtype=torch.bfloat16) * 0.2)(B, Hkv, Sk, Dh)),
            "wq": _w((lambda *s: torch.randn(*s, dtype=torch.bfloat16) * 1.6)(D, Hq * Dh) * (D ** -0.5)),
            "wo": _w((lambda *s: torch.randn(*s, dtype=torch.bfloat16) * 0.2)(Hq * Dh, D) * ((Hq * Dh) ** -0.5)),
        }
    _B_in = _B_setup()

    return {
        "A_x": _A_in["x"],
        "A_k_cache": _A_in["k_cache"],
        "A_v_cache": _A_in["v_cache"],
        "A_wq": _A_in["wq"],
        "A_wo": _A_in["wo"],
        "B_x": _B_in["x"],
        "B_k_cache": _B_in["k_cache"],
        "B_v_cache": _B_in["v_cache"],
        "B_wq": _B_in["wq"],
        "B_wo": _B_in["wo"],
    }

def reference(A_x, A_k_cache, A_v_cache, A_wq, A_wo, B_x, B_k_cache, B_v_cache, B_wq, B_wo):
    def _A_ref(x, k_cache, v_cache, wq, wo):
        B, Sq, D = x.shape
        Hq, Dh = 32, 128
        Hkv, Sk = k_cache.shape[1], k_cache.shape[2]
        W = min(4096, max(256, Sk // 4))
        rep = Hq // Hkv
        q = (lambda x, *d: x.permute(*d))((x @ wq).reshape(B, Sq, Hq, Dh), 0, 2, 1, 3)
        k = (lambda x, n, axis: torch.repeat_interleave(x, n, dim=axis))(k_cache[:, :, Sk - W:, :], rep, axis=1)
        v = (lambda x, n, axis: torch.repeat_interleave(x, n, dim=axis))(v_cache[:, :, Sk - W:, :], rep, axis=1)
        scores = torch.einsum("bhqd,bhkd->bhqk", q, k) * (Dh ** -0.5)
        p = _softmax(scores, axis=-1)
        o = torch.einsum("bhqk,bhkd->bhqd", p, v)
        return (lambda x, *d: x.permute(*d))(o, 0, 2, 1, 3).reshape(B, Sq, Hq * Dh) @ wo

    def _B_ref(x, k_cache, v_cache, wq, wo):
        B, Sq, D = x.shape
        Hq, Dh = 32, 128
        Hkv, Sk = k_cache.shape[1], k_cache.shape[2]
        W = min(4096, max(256, Sk // 4))
        rep = Hq // Hkv
        q = (lambda x, *d: x.permute(*d))((x @ wq).reshape(B, Sq, Hq, Dh), 0, 2, 1, 3)
        k = (lambda x, n, axis: torch.repeat_interleave(x, n, dim=axis))(k_cache[:, :, Sk - W:, :], rep, axis=1)
        v = (lambda x, n, axis: torch.repeat_interleave(x, n, dim=axis))(v_cache[:, :, Sk - W:, :], rep, axis=1)
        scores = torch.einsum("bhqd,bhkd->bhqk", q, k) * (Dh ** -0.5)
        p = _softmax(scores, axis=-1)
        o = torch.einsum("bhqk,bhkd->bhqd", p, v)
        return (lambda x, *d: x.permute(*d))(o, 0, 2, 1, 3).reshape(B, Sq, Hq * Dh) @ wo

    a = _A_ref(A_x, A_k_cache, A_v_cache, A_wq, A_wo)
    b = _B_ref(B_x, B_k_cache, B_v_cache, B_wq, B_wo)
    return torch.concatenate([a, b], axis=-1)
```

```python
import struct, math, sys

NAME = "concat_heads__sliding_block_cached__sliding_block_cached__decode"
OUT = "cdna_kernels/%s.s" % NAME

WS_SIZE = 285220864
Q_OFF = 0x0
ACC_OFF = 0x10000
ML_OFF = 0x90000
P3_OFF = 0xA0000

def f32hex(x):
    return "0x%08x" % struct.unpack("<I", struct.pack("<f", x))[0]

CEXP = (128 ** -0.5) * math.log2(math.e)

L = []
def e(s=""):
    L.append("    " + s if s and not s.endswith(":") else s)

def header():
    L.append(open("cdna_kernels/%s.s.ref" % NAME).read().split("; Override launch")[0].rstrip())
    L.append("; @launch kernel=qproj_kernel grid=(64,1,1) block=(1024,1,1) lds=32768")
    L.append("; @launch kernel=%s_kernel grid=(256,1,1) block=(512,1,1) lds=16640" % NAME)
    L.append("; @launch kernel=oproj_kernel grid=(256,1,1) block=(256,1,1) lds=8256")
    L.append('.amdgcn_target "amdgcn-amd-amdhsa--gfx950"')
    L.append(".text")

def kstart(name):
    L.append(".globl %s" % name)
    L.append(".p2align 8")
    L.append(".type %s,@function" % name)
    L.append("%s:" % name)

def kdesc(name, vgpr, sgpr):
    L.append('.section .rodata,"a"')
    L.append(".p2align 6")
    L.append(".amdhsa_kernel %s" % name)
    L.append("  .amdhsa_next_free_vgpr %d" % vgpr)
    L.append("  .amdhsa_next_free_sgpr %d" % sgpr)
    L.append("  .amdhsa_accum_offset %d" % (((vgpr + 3) // 4) * 4))
    L.append("  .amdhsa_group_segment_fixed_size 0")
    L.append("  .amdhsa_kernarg_size 104")
    L.append("  .amdhsa_user_sgpr_count 2")
    L.append("  .amdhsa_user_sgpr_kernarg_segment_ptr 1")
    L.append("  .amdhsa_system_sgpr_workgroup_id_x 1")
    L.append(".end_amdhsa_kernel")

def srd(d, base_lo, size):
    e("s_mov_b32 s%d, 0x%x" % (d + 2, size))
    e("s_mov_b32 s%d, 0x00020000" % (d + 3))

def k_qproj():
    kstart("qproj_kernel")
    e("s_cmp_ge_u32 s2, 64")
    e("s_cbranch_scc1 L_q_done")
    e("s_lshr_b32 s3, s2, 5")
    e("s_mul_i32 s4, s3, 40")
    e("s_load_dwordx2 s[8:9], s[0:1], s4")
    e("s_add_u32 s5, s4, 24")
    e("s_load_dwordx2 s[12:13], s[0:1], s5")
    e("s_load_dwordx2 s[16:17], s[0:1], 96")
    e("s_and_b32 s6, s2, 31")
    e("v_and_b32 v1, 63, v0")
    e("v_lshrrev_b32 v2, 6, v0")
    e("v_and_b32 v3, 3, v1")
    e("v_lshlrev_b32 v3, 10, v3")
    e("v_lshrrev_b32 v4, 4, v1")
    e("v_lshlrev_b32 v5, 4, v4")
    e("v_add_u32 v3, v3, v5")
    e("v_lshlrev_b32 v5, 6, v2")
    e("v_add_u32 v3, v3, v5")
    e("v_lshlrev_b32 v5, 18, v2")
    e("v_lshlrev_b32 v6, 16, v4")
    e("v_add_u32 v5, v5, v6")
    e("v_and_b32 v6, 15, v1")
    e("v_lshlrev_b32 v6, 4, v6")
    e("v_add_u32 v5, v5, v6")
    e("s_lshl_b32 s7, s6, 8")
    e("v_add_u32 v5, s7, v5")
    for jj in range(8):
        e("s_mov_b32 s%d, 0x%x" % (20 + jj, jj * 8192))
    e("s_mov_b32 s28, 0x05040100")
    e("s_mov_b32 s29, 0x07060302")
    e("s_waitcnt lgkmcnt(0)")
    srd(8, 8, 4096)
    srd(12, 12, 0x400000)
    srd(16, 16, WS_SIZE)
    e("buffer_load_dwordx4 v[8:11], v3, s[8:11], 0 offen")
    for jj in range(8):
        e("buffer_load_dwordx4 v[%d:%d], v5, s[12:15], s%d offen" % (12 + 4 * jj, 15 + 4 * jj, 20 + jj))
    e("s_waitcnt vmcnt(0)")
    for w in range(4):
        for ee in range(2):
            c = 2 * w + ee
            t = 44 + 4 * (c & 1)
            for m in range(4):
                e("v_perm_b32 v%d, v%d, v%d, s%d" % (t + m, 12 + 4 * (2 * m + 1) + w, 12 + 4 * (2 * m) + w, 28 + ee))
            e("s_nop 1")
            e("v_mfma_f32_16x16x32_bf16 v[%d:%d], v[8:11], v[%d:%d], 0" % (52 + 4 * c, 55 + 4 * c, t, t + 3))
    e("s_nop 7")
    e("s_nop 3")
    e("v_lshlrev_b32 v6, 11, v2")
    e("v_and_b32 v7, 15, v1")
    e("v_lshlrev_b32 v7, 5, v7")
    e("v_add_u32 v6, v6, v7")
    e("v_cmp_gt_u32 vcc, 16, v1")
    e("s_and_saveexec_b64 s[30:31], vcc")
    for c in range(8):
        for r in range(4):
            e("ds_write_b32 v6, v%d offset:%d" % (52 + 4 * c + r, r * 512 + c * 4))
    e("s_mov_b64 exec, s[30:31]")
    e("s_waitcnt lgkmcnt(0)")
    e("s_barrier")
    e("v_cmp_gt_u32 vcc, 512, v0")
    e("s_and_saveexec_b64 s[30:31], vcc")
    e("s_cbranch_execz L_q_restore")
    e("v_lshlrev_b32 v6, 2, v0")
    for w in range(16):
        e("ds_read_b32 v%d, v6 offset:%d" % (12 + w, w * 2048))
    e("s_waitcnt lgkmcnt(0)")
    for w in range(1, 16):
        e("v_add_f32 v12, v12, v%d" % (12 + w))
    e("v_cvt_pk_bf16_f32 v12, v12, v12")
    e("v_lshrrev_b32 v7, 7, v0")
    e("v_lshlrev_b32 v7, 13, v7")
    e("v_and_b32 v8, 127, v0")
    e("v_lshlrev_b32 v8, 1, v8")
    e("v_add_u32 v7, v7, v8")
    e("s_lshl_b32 s7, s3, 15")
    e("s_lshl_b32 s5, s6, 8")
    e("s_add_u32 s7, s7, s5")
    e("v_add_u32 v7, s7, v7")
    e("buffer_store_short v12, v7, s[16:19], 0 offen")
    e("s_waitcnt vmcnt(0)")
    L.append("L_q_restore:")
    e("s_mov_b64 exec, s[30:31]")
    L.append("L_q_done:")
    e("s_endpgm")

def k_attn():
    kstart(NAME + "_kernel")
    e("s_cmp_ge_u32 s2, 256")
    e("s_cbranch_scc1 L_a_done")
    e("s_lshr_b32 s3, s2, 7")
    e("s_mul_i32 s4, s3, 40")
    e("s_add_u32 s5, s4, 8")
    e("s_load_dwordx2 s[8:9], s[0:1], s5")
    e("s_add_u32 s5, s4, 16")
    e("s_load_dwordx2 s[12:13], s[0:1], s5")
    e("s_load_dwordx2 s[16:17], s[0:1], 96")
    e("s_lshr_b32 s4, s2, 5")
    e("s_and_b32 s4, s4, 3")
    e("s_lshr_b32 s5, s2, 2")
    e("s_and_b32 s5, s5, 7")
    e("s_and_b32 s6, s2, 3")
    e("v_and_b32 v1, 63, v0")
    e("v_lshrrev_b32 v2, 6, v0")
    e("v_and_b32 v3, 15, v1")
    e("v_lshrrev_b32 v4, 4, v1")
    e("v_lshlrev_b32 v5, 8, v3")
    e("v_lshlrev_b32 v6, 4, v4")
    e("v_add_u32 v5, v5, v6")
    e("v_lshlrev_b32 v6, 14, v2")
    e("v_add_u32 v5, v5, v6")
    e("v_lshlrev_b32 v7, 10, v4")
    e("v_lshlrev_b32 v8, 4, v3")
    e("v_add_u32 v7, v7, v8")
    e("v_add_u32 v7, v7, v6")
    e("v_and_b32 v8, 3, v1")
    e("v_lshlrev_b32 v8, 8, v8")
    e("v_lshlrev_b32 v9, 4, v4")
    e("v_add_u32 v8, v8, v9")
    e("s_lshl_b32 s7, s3, 15")
    e("s_lshl_b32 s20, s4, 13")
    e("s_add_u32 s7, s7, s20")
    e("s_lshl_b32 s20, s5, 10")
    e("s_add_u32 s7, s7, s20")
    e("v_add_u32 v8, s7, v8")
    e("s_lshl_b32 s20, s4, 3")
    e("s_add_u32 s20, s20, s5")
    e("s_lshl_b32 s20, s20, 21")
    e("s_lshl_b32 s21, s6, 17")
    e("s_add_u32 s20, s20, s21")
    e("s_add_u32 s20, s20, 0x180000")
    e("s_add_u32 s21, s20, 0x1000")
    e("s_add_u32 s22, s20, 0x2000")
    e("s_add_u32 s23, s20, 0x3000")
    e("s_mov_b32 s28, 0x05040100")
    e("s_mov_b32 s29, 0x07060302")
    e("s_waitcnt lgkmcnt(0)")
    srd(8, 8, 0x4000000)
    srd(12, 12, 0x4000000)
    srd(16, 16, WS_SIZE)
    QB, KB, VB, SB, PB, AB, TB = 16, 32, 96, 160, 176, 184, 216
    for c in range(4):
        e("buffer_load_dwordx4 v[%d:%d], v8, s[16:19], 0 offen offset:%d" % (QB + 4 * c, QB + 4 * c + 3, c * 64))
    for t in range(4):
        for c in range(4):
            r = KB + t * 16 + c * 4
            e("buffer_load_dwordx4 v[%d:%d], v5, s[8:11], s%d offen offset:%d" % (r, r + 3, 20 + t, c * 64))
    for g in range(2):
        for jj in range(8):
            r = VB + g * 32 + jj * 4
            e("buffer_load_dwordx4 v[%d:%d], v7, s[12:15], s%d offen offset:%d" % (r, r + 3, 20 + 2 * g + (jj >> 2), (jj & 3) * 256))
    for t in range(4):
        e("s_waitcnt vmcnt(%d)" % (36 - 4 - 4 * (t + 1)))
        for c in range(4):
            r = KB + t * 16 + c * 4
            src = "0" if c == 0 else "v[%d:%d]" % (SB + 4 * t, SB + 4 * t + 3)
            e("v_mfma_f32_16x16x32_bf16 v[%d:%d], v[%d:%d], v[%d:%d], %s" % (SB + 4 * t, SB + 4 * t + 3, r, r + 3, QB + 4 * c, QB + 4 * c + 3, src))
    e("s_nop 7")
    e("s_nop 3")
    e("v_max3_f32 v10, v%d, v%d, v%d" % (SB, SB + 1, SB + 2))
    for i in range(3, 15, 2):
        e("v_max3_f32 v10, v10, v%d, v%d" % (SB + i, SB + i + 1))
    e("v_max_f32 v10, v10, v%d" % (SB + 15))
    e("v_lshlrev_b32 v11, 2, v1")
    e("v_xor_b32 v12, 64, v11")
    e("ds_bpermute_b32 v13, v12, v10")
    e("s_waitcnt lgkmcnt(0)")
    e("v_max_f32 v10, v10, v13")
    e("v_xor_b32 v14, 0x80, v11")
    e("ds_bpermute_b32 v13, v14, v10")
    e("s_waitcnt lgkmcnt(0)")
    e("v_max_f32 v10, v10, v13")
    e("s_mov_b32 s24, %s" % f32hex(CEXP))
    e("v_mul_f32 v15, s24, v10")
    e("v_sub_f32 v15, 0, v15")
    for i in range(16):
        e("v_fma_f32 v%d, v%d, s24, v15" % (SB + i, SB + i))
    for i in range(16):
        e("v_exp_f32 v%d, v%d" % (SB + i, SB + i))
    e("s_nop 1")
    e("v_add_f32 v13, v%d, v%d" % (SB, SB + 1))
    for i in range(2, 16):
        e("v_add_f32 v13, v13, v%d" % (SB + i))
    for i in range(8):
        e("v_cvt_pk_bf16_f32 v%d, v%d, v%d" % (PB + i, SB + 2 * i, SB + 2 * i + 1))
    e("ds_bpermute_b32 v224, v12, v13")
    e("s_waitcnt lgkmcnt(0)")
    e("v_add_f32 v13, v13, v224")
    e("ds_bpermute_b32 v224, v14, v13")
    e("s_waitcnt lgkmcnt(0)")
    e("v_add_f32 v13, v13, v224")
    for g in range(2):
        e("s_waitcnt vmcnt(%d)" % (36 - 20 - 8 * (g + 1)))
        for w in range(4):
            for ee in range(2):
                c = 2 * w + ee
                t = TB + 4 * (c & 1)
                for m in range(4):
                    e("v_perm_b32 v%d, v%d, v%d, s%d" % (t + m, VB + g * 32 + (2 * m + 1) * 4 + w, VB + g * 32 + (2 * m) * 4 + w, 28 + ee))
                e("s_nop 1")
                src = "0" if g == 0 else "v[%d:%d]" % (AB + 4 * c, AB + 4 * c + 3)
                e("v_mfma_f32_16x16x32_bf16 v[%d:%d], v[%d:%d], v[%d:%d], %s" % (AB + 4 * c, AB + 4 * c + 3, t, t + 3, PB + 4 * g, PB + 4 * g + 3, src))
    e("s_nop 7")
    e("s_nop 3")
    e("v_lshlrev_b32 v224, 11, v2")
    e("v_lshlrev_b32 v225, 9, v3")
    e("v_add_u32 v224, v224, v225")
    e("v_lshlrev_b32 v225, 7, v4")
    e("v_add_u32 v224, v224, v225")
    e("v_cmp_gt_u32 vcc, 4, v3")
    e("s_and_saveexec_b64 s[30:31], vcc")
    for c in range(8):
        for r in range(4):
            e("ds_write_b32 v224, v%d offset:%d" % (AB + 4 * c + r, r * 32 + c * 4))
    e("s_mov_b64 exec, s[30:31]")
    e("v_lshlrev_b32 v225, 5, v2")
    e("v_lshlrev_b32 v226, 3, v1")
    e("v_add_u32 v225, v225, v226")
    e("v_add_u32 v225, 0x4000, v225")
    e("v_mov_b32 v226, v10")
    e("v_mov_b32 v227, v13")
    e("v_cmp_gt_u32 vcc, 4, v1")
    e("s_and_saveexec_b64 s[30:31], vcc")
    e("ds_write_b64 v225, v[226:227]")
    e("s_mov_b64 exec, s[30:31]")
    e("s_waitcnt lgkmcnt(0)")
    e("s_barrier")
    e("v_lshrrev_b32 v224, 7, v0")
    e("v_lshlrev_b32 v225, 3, v224")
    e("v_add_u32 v225, 0x4000, v225")
    for w in range(8):
        e("ds_read_b64 v[%d:%d], v225 offset:%d" % (32 + 2 * w, 33 + 2 * w, w * 32))
    e("v_lshlrev_b32 v226, 9, v224")
    e("v_and_b32 v227, 127, v0")
    e("v_lshlrev_b32 v227, 2, v227")
    e("v_add_u32 v226, v226, v227")
    for w in range(8):
        e("ds_read_b32 v%d, v226 offset:%d" % (48 + w, w * 2048))
    e("s_waitcnt lgkmcnt(0)")
    e("v_max3_f32 v56, v32, v34, v36")
    e("v_max3_f32 v56, v56, v38, v40")
    e("v_max3_f32 v56, v56, v42, v44")
    e("v_max_f32 v56, v56, v46")
    e("v_mul_f32 v57, s24, v56")
    e("v_sub_f32 v57, 0, v57")
    for w in range(8):
        e("v_fma_f32 v%d, v%d, s24, v57" % (60 + w, 32 + 2 * w))
    for w in range(8):
        e("v_exp_f32 v%d, v%d" % (60 + w, 60 + w))
    e("s_nop 1")
    e("v_mul_f32 v58, v60, v33")
    e("v_mul_f32 v59, v60, v48")
    for w in range(1, 8):
        e("v_fma_f32 v58, v%d, v%d, v58" % (60 + w, 33 + 2 * w))
        e("v_fma_f32 v59, v%d, v%d, v59" % (60 + w, 48 + w))
    e("s_lshl_b32 s7, s3, 2")
    e("s_add_u32 s7, s7, s4")
    e("s_lshl_b32 s7, s7, 5")
    e("s_lshl_b32 s25, s5, 2")
    e("s_add_u32 s7, s7, s25")
    e("s_lshl_b32 s7, s7, 2")
    e("s_add_u32 s7, s7, s6")
    e("s_lshl_b32 s25, s7, 9")
    e("s_add_u32 s25, s25, 0x%x" % ACC_OFF)
    e("v_lshlrev_b32 v226, 11, v224")
    e("v_add_u32 v226, v226, v227")
    e("v_add_u32 v226, s25, v226")
    e("buffer_store_dword v59, v226, s[16:19], 0 offen")
    e("s_lshl_b32 s25, s7, 3")
    e("s_add_u32 s25, s25, 0x%x" % ML_OFF)
    e("v_lshlrev_b32 v226, 5, v224")
    e("v_add_u32 v226, s25, v226")
    e("v_mov_b32 v68, v56")
    e("v_mov_b32 v69, v58")
    e("v_and_b32 v227, 127, v0")
    e("v_cmp_eq_u32 vcc, 0, v227")
    e("s_and_saveexec_b64 s[30:31], vcc")
    e("buffer_store_dwordx2 v[68:69], v226, s[16:19], 0 offen")
    e("s_mov_b64 exec, s[30:31]")
    e("s_waitcnt vmcnt(0)")
    L.append("L_a_done:")
    e("s_endpgm")

def k_oproj():
    kstart("oproj_kernel")
    e("s_cmp_ge_u32 s2, 256")
    e("s_cbranch_scc1 L_o_done")
    e("s_lshr_b32 s3, s2, 7")
    e("s_mul_i32 s4, s3, 40")
    e("s_add_u32 s5, s4, 32")
    e("s_load_dwordx2 s[12:13], s[0:1], s5")
    e("s_load_dwordx2 s[16:17], s[0:1], 96")
    e("s_load_dwordx2 s[8:9], s[0:1], 80")
    e("s_load_dwordx2 s[32:33], s[0:1], 88")
    e("s_lshr_b32 s4, s2, 5")
    e("s_and_b32 s4, s4, 3")
    e("s_and_b32 s5, s2, 31")
    e("v_and_b32 v1, 63, v0")
    e("v_lshrrev_b32 v2, 6, v0")
    e("v_and_b32 v3, 15, v1")
    e("v_lshrrev_b32 v4, 4, v1")
    e("v_lshlrev_b32 v5, 15, v2")
    e("v_lshlrev_b32 v6, 13, v4")
    e("v_add_u32 v5, v5, v6")
    e("v_lshlrev_b32 v6, 4, v3")
    e("v_add_u32 v5, v5, v6")
    e("s_lshl_b32 s7, s5, 17")
    e("s_lshl_b32 s20, s4, 8")
    e("s_add_u32 s7, s7, s20")
    e("v_add_u32 v5, s7, v5")
    e("s_mov_b32 s20, 0")
    e("s_mov_b32 s21, 0x1000")
    e("v_and_b32 v6, 3, v1")
    e("v_lshlrev_b32 v7, 10, v6")
    e("s_lshl_b32 s7, s3, 12")
    e("s_lshl_b32 s22, s5, 5")
    e("s_add_u32 s7, s7, s22")
    e("s_add_u32 s7, s7, 0x%x" % ML_OFF)
    e("v_add_u32 v7, s7, v7")
    e("v_lshlrev_b32 v8, 16, v6")
    e("v_lshlrev_b32 v9, 7, v2")
    e("v_add_u32 v8, v8, v9")
    e("v_lshlrev_b32 v9, 5, v4")
    e("v_add_u32 v8, v8, v9")
    e("s_lshl_b32 s7, s3, 18")
    e("s_lshl_b32 s22, s5, 11")
    e("s_add_u32 s7, s7, s22")
    e("s_add_u32 s7, s7, 0x%x" % ACC_OFF)
    e("v_add_u32 v8, s7, v8")
    e("s_mov_b32 s28, 0x05040100")
    e("s_mov_b32 s29, 0x07060302")
    e("s_mov_b32 s24, %s" % f32hex(CEXP))
    e("s_waitcnt lgkmcnt(0)")
    srd(12, 12, 0x400000)
    srd(16, 16, WS_SIZE)
    srd(8, 8, 8192)
    srd(32, 32, 256)
    WB = 12
    for jj in range(8):
        e("buffer_load_dwordx4 v[%d:%d], v5, s[12:15], s%d offen offset:%d" % (WB + 4 * jj, WB + 4 * jj + 3, 20 + (jj >> 2), (jj & 3) * 1024))
    e("buffer_load_dwordx4 v[44:47], v7, s[16:19], 0 offen")
    e("buffer_load_dwordx4 v[48:51], v7, s[16:19], 0 offen offset:16")
    for s in range(4):
        e("buffer_load_dwordx4 v[%d:%d], v8, s[16:19], 0 offen offset:%d" % (52 + 8 * s, 55 + 8 * s, s * 512))
        e("buffer_load_dwordx4 v[%d:%d], v8, s[16:19], 0 offen offset:%d" % (56 + 8 * s, 59 + 8 * s, s * 512 + 16))
    e("s_waitcnt vmcnt(0)")
    e("v_max3_f32 v84, v44, v46, v48")
    e("v_max_f32 v84, v84, v50")
    e("v_mul_f32 v85, s24, v84")
    e("v_sub_f32 v85, 0, v85")
    for s in range(4):
        e("v_fma_f32 v%d, v%d, s24, v85" % (86 + s, 44 + 2 * s))
    for s in range(4):
        e("v_exp_f32 v%d, v%d" % (86 + s, 86 + s))
    e("s_nop 1")
    e("v_mul_f32 v90, v86, v45")
    for s in range(1, 4):
        e("v_fma_f32 v90, v%d, v%d, v90" % (86 + s, 45 + 2 * s))
    e("v_rcp_f32 v90, v90")
    e("s_nop 1")
    for s in range(4):
        e("v_mul_f32 v%d, v%d, v90" % (86 + s, 86 + s))
    for jj in range(8):
        e("v_mul_f32 v%d, v86, v%d" % (92 + jj, 52 + jj))
        for s in range(1, 4):
            e("v_fma_f32 v%d, v%d, v%d, v%d" % (92 + jj, 86 + s, 52 + 8 * s + jj, 92 + jj))
    for m in range(4):
        e("v_cvt_pk_bf16_f32 v%d, v%d, v%d" % (100 + m, 92 + 2 * m, 93 + 2 * m))
    for w in range(4):
        for ee in range(2):
            c = 2 * w + ee
            t = 104 + 4 * (c & 1)
            for m in range(4):
                e("v_perm_b32 v%d, v%d, v%d, s%d" % (t + m, WB + 4 * (2 * m + 1) + w, WB + 4 * (2 * m) + w, 28 + ee))
            e("s_nop 1")
            e("v_mfma_f32_16x16x32_bf16 v[%d:%d], v[100:103], v[%d:%d], 0" % (112 + 4 * c, 115 + 4 * c, t, t + 3))
    e("s_nop 7")
    e("s_nop 3")
    e("v_lshlrev_b32 v6, 11, v2")
    e("v_lshlrev_b32 v7, 5, v3")
    e("v_add_u32 v6, v6, v7")
    e("v_cmp_gt_u32 vcc, 16, v1")
    e("s_and_saveexec_b64 s[30:31], vcc")
    for c in range(8):
        for r in range(4):
            e("ds_write_b32 v6, v%d offset:%d" % (112 + 4 * c + r, r * 512 + c * 4))
    e("s_mov_b64 exec, s[30:31]")
    e("s_waitcnt lgkmcnt(0)")
    e("s_barrier")
    e("v_lshlrev_b32 v6, 3, v0")
    for w in range(4):
        e("ds_read_b64 v[%d:%d], v6 offset:%d" % (12 + 2 * w, 13 + 2 * w, w * 2048))
    e("s_waitcnt lgkmcnt(0)")
    e("v_add_f32 v12, v12, v14")
    e("v_add_f32 v13, v13, v15")
    e("v_add_f32 v12, v12, v16")
    e("v_add_f32 v13, v13, v17")
    e("v_add_f32 v12, v12, v18")
    e("v_add_f32 v13, v13, v19")
    e("s_lshl_b32 s7, s3, 2")
    e("s_add_u32 s7, s7, s4")
    e("s_lshl_b32 s22, s7, 16")
    e("s_add_u32 s22, s22, 0x%x" % P3_OFF)
    e("s_lshl_b32 s23, s5, 11")
    e("s_add_u32 s23, s23, s22")
    e("v_add_u32 v7, s23, v6")
    e("buffer_store_dwordx2 v[12:13], v7, s[16:19], 0 offen sc0 sc1")
    e("s_waitcnt vmcnt(0)")
    e("s_barrier")
    e("v_cmp_eq_u32 vcc, 0, v0")
    e("s_and_saveexec_b64 s[30:31], vcc")
    e("v_mov_b32 v14, 1")
    e("s_lshl_b32 s25, s7, 4")
    e("v_mov_b32 v15, s25")
    e("buffer_atomic_add v14, v15, s[32:35], 0 offen sc0 sc1")
    e("s_waitcnt vmcnt(0)")
    e("v_mov_b32 v16, 0x2000")
    e("ds_write_b32 v16, v14")
    e("s_mov_b64 exec, s[30:31]")
    e("s_waitcnt lgkmcnt(0)")
    e("s_barrier")
    e("v_mov_b32 v16, 0x2000")
    e("ds_read_b32 v14, v16")
    e("s_waitcnt lgkmcnt(0)")
    e("v_readfirstlane_b32 s26, v14")
    e("s_cmp_lg_u32 s26, 31")
    e("s_cbranch_scc1 L_o_done")
    e("v_add_u32 v7, s22, v6")
    for hh in range(32):
        e("buffer_load_dwordx2 v[%d:%d], v7, s[16:19], 0 offen offset:%d sc0 sc1" % (20 + 2 * hh, 21 + 2 * hh, 0) if hh == 0 else
          "buffer_load_dwordx2 v[%d:%d], v7, s[16:19], s%d offen sc0 sc1" % (20 + 2 * hh, 21 + 2 * hh, 36 + hh))
    e("s_waitcnt vmcnt(0)")
    for hh in range(1, 32):
        e("v_add_f32 v20, v20, v%d" % (20 + 2 * hh))
        e("v_add_f32 v21, v21, v%d" % (21 + 2 * hh))
    e("v_cvt_pk_bf16_f32 v20, v20, v21")
    e("v_lshrrev_b32 v8, 6, v0")
    e("v_lshlrev_b32 v8, 11, v8")
    e("v_and_b32 v9, 63, v0")
    e("v_lshlrev_b32 v9, 2, v9")
    e("v_add_u32 v8, v8, v9")
    e("s_lshl_b32 s25, s3, 10")
    e("s_lshl_b32 s26, s4, 8")
    e("s_add_u32 s25, s25, s26")
    e("v_add_u32 v8, s25, v8")
    e("buffer_store_dword v20, v8, s[8:11], 0 offen")
    e("s_waitcnt vmcnt(0)")
    L.append("L_o_done:")
    e("s_endpgm")

def fixup_oproj_soffsets():
    idx = next(i for i, l in enumerate(L) if "v_cmp_eq_u32 vcc, 0, v0" in l)
    ins = ["    s_mov_b32 s%d, 0x%x" % (36 + hh, hh * 2048) for hh in range(1, 32)]
    L[idx:idx] = ins

header()
k_qproj()
k_attn()
k_oproj()
fixup_oproj_soffsets()
kdesc("qproj_kernel", 84, 40)
kdesc(NAME + "_kernel", 228, 40)
kdesc("oproj_kernel", 144, 72)
open(OUT, "w").write("\n".join(L) + "\n")
print("wrote", OUT, len(L), "lines")
```

```python
import struct, math, sys

NAME = "concat_heads__sliding_block_cached__sliding_block_cached__decode"
OUT = "cdna_kernels/%s.s" % NAME

WS_SIZE = 285220864
Q_OFF = 0x0
ACC_OFF = 0x10000
ML_OFF = 0x90000
P3_OFF = 0xA0000

def f32hex(x):
    return "0x%08x" % struct.unpack("<I", struct.pack("<f", x))[0]

CEXP = (128 ** -0.5) * math.log2(math.e)

L = []
def e(s=""):
    L.append("    " + s if s and not s.endswith(":") else s)

def header():
    L.append(open("cdna_kernels/%s.s.ref" % NAME).read().split("; Override launch")[0].rstrip())
    L.append("; @launch kernel=qproj_kernel grid=(64,1,1) block=(1024,1,1) lds=32768")
    L.append("; @launch kernel=%s_kernel grid=(256,1,1) block=(512,1,1) lds=16640" % NAME)
    L.append("; @launch kernel=oproj_kernel grid=(256,1,1) block=(256,1,1) lds=8256")
    L.append('.amdgcn_target "amdgcn-amd-amdhsa--gfx950"')
    L.append(".text")

def kstart(name):
    L.append(".globl %s" % name)
    L.append(".p2align 8")
    L.append(".type %s,@function" % name)
    L.append("%s:" % name)

def kdesc(name, vgpr, sgpr):
    L.append('.section .rodata,"a"')
    L.append(".p2align 6")
    L.append(".amdhsa_kernel %s" % name)
    L.append("  .amdhsa_next_free_vgpr %d" % vgpr)
    L.append("  .amdhsa_next_free_sgpr %d" % sgpr)
    L.append("  .amdhsa_accum_offset %d" % (((vgpr + 3) // 4) * 4))
    L.append("  .amdhsa_group_segment_fixed_size 0")
    L.append("  .amdhsa_kernarg_size 104")
    L.append("  .amdhsa_user_sgpr_count 2")
    L.append("  .amdhsa_user_sgpr_kernarg_segment_ptr 1")
    L.append("  .amdhsa_system_sgpr_workgroup_id_x 1")
    L.append(".end_amdhsa_kernel")

def srd(d, base_lo, size):
    e("s_mov_b32 s%d, 0x%x" % (d + 2, size))
    e("s_mov_b32 s%d, 0x00020000" % (d + 3))

def k_qproj():
    kstart("qproj_kernel")
    e("s_cmp_ge_u32 s2, 64")
    e("s_cbranch_scc1 L_q_done")
    e("s_lshr_b32 s3, s2, 5")
    e("s_mul_i32 s4, s3, 40")
    e("s_load_dwordx2 s[8:9], s[0:1], s4")
    e("s_add_u32 s5, s4, 24")
    e("s_load_dwordx2 s[12:13], s[0:1], s5")
    e("s_load_dwordx2 s[16:17], s[0:1], 96")
    e("s_and_b32 s6, s2, 31")
    e("v_and_b32 v1, 63, v0")
    e("v_lshrrev_b32 v2, 6, v0")
    e("v_and_b32 v3, 3, v1")
    e("v_lshlrev_b32 v3, 10, v3")
    e("v_lshrrev_b32 v4, 4, v1")
    e("v_lshlrev_b32 v5, 4, v4")
    e("v_add_u32 v3, v3, v5")
    e("v_lshlrev_b32 v5, 6, v2")
    e("v_add_u32 v3, v3, v5")
    e("v_lshlrev_b32 v5, 18, v2")
    e("v_lshlrev_b32 v6, 16, v4")
    e("v_add_u32 v5, v5, v6")
    e("v_and_b32 v6, 15, v1")
    e("v_lshlrev_b32 v6, 4, v6")
    e("v_add_u32 v5, v5, v6")
    e("s_lshl_b32 s7, s6, 8")
    e("v_add_u32 v5, s7, v5")
    for jj in range(8):
        e("s_mov_b32 s%d, 0x%x" % (20 + jj, jj * 8192))
    e("s_mov_b32 s28, 0x05040100")
    e("s_mov_b32 s29, 0x07060302")
    e("s_waitcnt lgkmcnt(0)")
    srd(8, 8, 4096)
    srd(12, 12, 0x400000)
    srd(16, 16, WS_SIZE)
    e("buffer_load_dwordx4 v[8:11], v3, s[8:11], 0 offen")
    for jj in range(8):
        e("buffer_load_dwordx4 v[%d:%d], v5, s[12:15], s%d offen nt" % (12 + 4 * jj, 15 + 4 * jj, 20 + jj))
    e("s_waitcnt vmcnt(0)")
    for w in range(4):
        for ee in range(2):
            c = 2 * w + ee
            t = 44 + 4 * (c & 1)
            for m in range(4):
                e("v_perm_b32 v%d, v%d, v%d, s%d" % (t + m, 12 + 4 * (2 * m + 1) + w, 12 + 4 * (2 * m) + w, 28 + ee))
            e("s_nop 1")
            e("v_mfma_f32_16x16x32_bf16 v[%d:%d], v[8:11], v[%d:%d], 0" % (52 + 4 * c, 55 + 4 * c, t, t + 3))
    e("s_nop 7")
    e("s_nop 3")
    e("v_lshlrev_b32 v6, 11, v2")
    e("v_and_b32 v7, 15, v1")
    e("v_lshlrev_b32 v7, 5, v7")
    e("v_add_u32 v6, v6, v7")
    e("v_cmp_gt_u32 vcc, 16, v1")
    e("s_and_saveexec_b64 s[30:31], vcc")
    for c in range(8):
        for r in range(4):
            e("ds_write_b32 v6, v%d offset:%d" % (52 + 4 * c + r, r * 512 + c * 4))
    e("s_mov_b64 exec, s[30:31]")
    e("s_waitcnt lgkmcnt(0)")
    e("s_barrier")
    e("v_cmp_gt_u32 vcc, 512, v0")
    e("s_and_saveexec_b64 s[30:31], vcc")
    e("s_cbranch_execz L_q_restore")
    e("v_lshlrev_b32 v6, 2, v0")
    for w in range(16):
        e("ds_read_b32 v%d, v6 offset:%d" % (12 + w, w * 2048))
    e("s_waitcnt lgkmcnt(0)")
    for w in range(1, 16):
        e("v_add_f32 v12, v12, v%d" % (12 + w))
    e("v_cvt_pk_bf16_f32 v12, v12, v12")
    e("v_lshrrev_b32 v7, 7, v0")
    e("v_lshlrev_b32 v7, 13, v7")
    e("v_and_b32 v8, 127, v0")
    e("v_lshlrev_b32 v8, 1, v8")
    e("v_add_u32 v7, v7, v8")
    e("s_lshl_b32 s7, s3, 15")
    e("s_lshl_b32 s5, s6, 8")
    e("s_add_u32 s7, s7, s5")
    e("v_add_u32 v7, s7, v7")
    e("buffer_store_short v12, v7, s[16:19], 0 offen")
    e("s_waitcnt vmcnt(0)")
    L.append("L_q_restore:")
    e("s_mov_b64 exec, s[30:31]")
    L.append("L_q_done:")
    e("s_endpgm")

def k_attn():
    kstart(NAME + "_kernel")
    e("s_cmp_ge_u32 s2, 256")
    e("s_cbranch_scc1 L_a_done")
    e("s_lshr_b32 s3, s2, 7")
    e("s_mul_i32 s4, s3, 40")
    e("s_add_u32 s5, s4, 8")
    e("s_load_dwordx2 s[8:9], s[0:1], s5")
    e("s_add_u32 s5, s4, 16")
    e("s_load_dwordx2 s[12:13], s[0:1], s5")
    e("s_load_dwordx2 s[16:17], s[0:1], 96")
    e("s_lshr_b32 s4, s2, 5")
    e("s_and_b32 s4, s4, 3")
    e("s_lshr_b32 s5, s2, 2")
    e("s_and_b32 s5, s5, 7")
    e("s_and_b32 s6, s2, 3")
    e("v_and_b32 v1, 63, v0")
    e("v_lshrrev_b32 v2, 6, v0")
    e("v_and_b32 v3, 15, v1")
    e("v_lshrrev_b32 v4, 4, v1")
    e("v_lshlrev_b32 v5, 8, v3")
    e("v_lshlrev_b32 v6, 4, v4")
    e("v_add_u32 v5, v5, v6")
    e("v_lshlrev_b32 v6, 14, v2")
    e("v_add_u32 v5, v5, v6")
    e("v_lshlrev_b32 v7, 10, v4")
    e("v_lshlrev_b32 v8, 4, v3")
    e("v_add_u32 v7, v7, v8")
    e("v_add_u32 v7, v7, v6")
    e("v_and_b32 v8, 3, v1")
    e("v_lshlrev_b32 v8, 8, v8")
    e("v_lshlrev_b32 v9, 4, v4")
    e("v_add_u32 v8, v8, v9")
    e("s_lshl_b32 s7, s3, 15")
    e("s_lshl_b32 s20, s4, 13")
    e("s_add_u32 s7, s7, s20")
    e("s_lshl_b32 s20, s5, 10")
    e("s_add_u32 s7, s7, s20")
    e("v_add_u32 v8, s7, v8")
    e("s_lshl_b32 s20, s4, 3")
    e("s_add_u32 s20, s20, s5")
    e("s_lshl_b32 s20, s20, 21")
    e("s_lshl_b32 s21, s6, 17")
    e("s_add_u32 s20, s20, s21")
    e("s_add_u32 s20, s20, 0x180000")
    e("s_add_u32 s21, s20, 0x1000")
    e("s_add_u32 s22, s20, 0x2000")
    e("s_add_u32 s23, s20, 0x3000")
    e("s_mov_b32 s28, 0x05040100")
    e("s_mov_b32 s29, 0x07060302")
    e("s_waitcnt lgkmcnt(0)")
    srd(8, 8, 0x4000000)
    srd(12, 12, 0x4000000)
    srd(16, 16, WS_SIZE)
    QB, KB, VB, SB, PB, AB, TB = 16, 32, 96, 160, 176, 184, 216
    for c in range(4):
        e("buffer_load_dwordx4 v[%d:%d], v8, s[16:19], 0 offen offset:%d" % (QB + 4 * c, QB + 4 * c + 3, c * 64))
    for t in range(4):
        for c in range(4):
            r = KB + t * 16 + c * 4
            e("buffer_load_dwordx4 v[%d:%d], v5, s[8:11], s%d offen offset:%d nt" % (r, r + 3, 20 + t, c * 64))
    for g in range(2):
        for jj in range(8):
            r = VB + g * 32 + jj * 4
            e("buffer_load_dwordx4 v[%d:%d], v7, s[12:15], s%d offen offset:%d nt" % (r, r + 3, 20 + 2 * g + (jj >> 2), (jj & 3) * 256))
    for t in range(4):
        e("s_waitcnt vmcnt(%d)" % (36 - 4 - 4 * (t + 1)))
        for c in range(4):
            r = KB + t * 16 + c * 4
            src = "0" if c == 0 else "v[%d:%d]" % (SB + 4 * t, SB + 4 * t + 3)
            e("v_mfma_f32_16x16x32_bf16 v[%d:%d], v[%d:%d], v[%d:%d], %s" % (SB + 4 * t, SB + 4 * t + 3, r, r + 3, QB + 4 * c, QB + 4 * c + 3, src))
    e("s_nop 7")
    e("s_nop 3")
    e("v_max3_f32 v10, v%d, v%d, v%d" % (SB, SB + 1, SB + 2))
    for i in range(3, 15, 2):
        e("v_max3_f32 v10, v10, v%d, v%d" % (SB + i, SB + i + 1))
    e("v_max_f32 v10, v10, v%d" % (SB + 15))
    e("v_lshlrev_b32 v11, 2, v1")
    e("v_xor_b32 v12, 64, v11")
    e("ds_bpermute_b32 v13, v12, v10")
    e("s_waitcnt lgkmcnt(0)")
    e("v_max_f32 v10, v10, v13")
    e("v_xor_b32 v14, 0x80, v11")
    e("ds_bpermute_b32 v13, v14, v10")
    e("s_waitcnt lgkmcnt(0)")
    e("v_max_f32 v10, v10, v13")
    e("s_mov_b32 s24, %s" % f32hex(CEXP))
    e("v_mul_f32 v15, s24, v10")
    e("v_sub_f32 v15, 0, v15")
    for i in range(16):
        e("v_fma_f32 v%d, v%d, s24, v15" % (SB + i, SB + i))
    for i in range(16):
        e("v_exp_f32 v%d, v%d" % (SB + i, SB + i))
    e("s_nop 1")
    e("v_add_f32 v13, v%d, v%d" % (SB, SB + 1))
    for i in range(2, 16):
        e("v_add_f32 v13, v13, v%d" % (SB + i))
    for i in range(8):
        e("v_cvt_pk_bf16_f32 v%d, v%d, v%d" % (PB + i, SB + 2 * i, SB + 2 * i + 1))
    e("ds_bpermute_b32 v224, v12, v13")
    e("s_waitcnt lgkmcnt(0)")
    e("v_add_f32 v13, v13, v224")
    e("ds_bpermute_b32 v224, v14, v13")
    e("s_waitcnt lgkmcnt(0)")
    e("v_add_f32 v13, v13, v224")
    for g in range(2):
        e("s_waitcnt vmcnt(%d)" % (36 - 20 - 8 * (g + 1)))
        for w in range(4):
            for ee in range(2):
                c = 2 * w + ee
                t = TB + 4 * (c & 1)
                for m in range(4):
                    e("v_perm_b32 v%d, v%d, v%d, s%d" % (t + m, VB + g * 32 + (2 * m + 1) * 4 + w, VB + g * 32 + (2 * m) * 4 + w, 28 + ee))
                e("s_nop 1")
                src = "0" if g == 0 else "v[%d:%d]" % (AB + 4 * c, AB + 4 * c + 3)
                e("v_mfma_f32_16x16x32_bf16 v[%d:%d], v[%d:%d], v[%d:%d], %s" % (AB + 4 * c, AB + 4 * c + 3, t, t + 3, PB + 4 * g, PB + 4 * g + 3, src))
    e("s_nop 7")
    e("s_nop 3")
    e("v_lshlrev_b32 v224, 11, v2")
    e("v_lshlrev_b32 v225, 9, v3")
    e("v_add_u32 v224, v224, v225")
    e("v_lshlrev_b32 v225, 7, v4")
    e("v_add_u32 v224, v224, v225")
    e("v_cmp_gt_u32 vcc, 4, v3")
    e("s_and_saveexec_b64 s[30:31], vcc")
    for c in range(8):
        for r in range(4):
            e("ds_write_b32 v224, v%d offset:%d" % (AB + 4 * c + r, r * 32 + c * 4))
    e("s_mov_b64 exec, s[30:31]")
    e("v_lshlrev_b32 v225, 5, v2")
    e("v_lshlrev_b32 v226, 3, v1")
    e("v_add_u32 v225, v225, v226")
    e("v_add_u32 v225, 0x4000, v225")
    e("v_mov_b32 v226, v10")
    e("v_mov_b32 v227, v13")
    e("v_cmp_gt_u32 vcc, 4, v1")
    e("s_and_saveexec_b64 s[30:31], vcc")
    e("ds_write_b64 v225, v[226:227]")
    e("s_mov_b64 exec, s[30:31]")
    e("s_waitcnt lgkmcnt(0)")
    e("s_barrier")
    e("v_lshrrev_b32 v224, 7, v0")
    e("v_lshlrev_b32 v225, 3, v224")
    e("v_add_u32 v225, 0x4000, v225")
    for w in range(8):
        e("ds_read_b64 v[%d:%d], v225 offset:%d" % (32 + 2 * w, 33 + 2 * w, w * 32))
    e("v_lshlrev_b32 v226, 9, v224")
    e("v_and_b32 v227, 127, v0")
    e("v_lshlrev_b32 v227, 2, v227")
    e("v_add_u32 v226, v226, v227")
    for w in range(8):
        e("ds_read_b32 v%d, v226 offset:%d" % (48 + w, w * 2048))
    e("s_waitcnt lgkmcnt(0)")
    e("v_max3_f32 v56, v32, v34, v36")
    e("v_max3_f32 v56, v56, v38, v40")
    e("v_max3_f32 v56, v56, v42, v44")
    e("v_max_f32 v56, v56, v46")
    e("v_mul_f32 v57, s24, v56")
    e("v_sub_f32 v57, 0, v57")
    for w in range(8):
        e("v_fma_f32 v%d, v%d, s24, v57" % (60 + w, 32 + 2 * w))
    for w in range(8):
        e("v_exp_f32 v%d, v%d" % (60 + w, 60 + w))
    e("s_nop 1")
    e("v_mul_f32 v58, v60, v33")
    e("v_mul_f32 v59, v60, v48")
    for w in range(1, 8):
        e("v_fma_f32 v58, v%d, v%d, v58" % (60 + w, 33 + 2 * w))
        e("v_fma_f32 v59, v%d, v%d, v59" % (60 + w, 48 + w))
    e("s_lshl_b32 s7, s3, 2")
    e("s_add_u32 s7, s7, s4")
    e("s_lshl_b32 s7, s7, 5")
    e("s_lshl_b32 s25, s5, 2")
    e("s_add_u32 s7, s7, s25")
    e("s_lshl_b32 s7, s7, 2")
    e("s_add_u32 s7, s7, s6")
    e("s_lshl_b32 s25, s7, 9")
    e("s_add_u32 s25, s25, 0x%x" % ACC_OFF)
    e("v_lshlrev_b32 v226, 11, v224")
    e("v_add_u32 v226, v226, v227")
    e("v_add_u32 v226, s25, v226")
    e("buffer_store_dword v59, v226, s[16:19], 0 offen")
    e("s_lshl_b32 s25, s7, 3")
    e("s_add_u32 s25, s25, 0x%x" % ML_OFF)
    e("v_lshlrev_b32 v226, 5, v224")
    e("v_add_u32 v226, s25, v226")
    e("v_mov_b32 v68, v56")
    e("v_mov_b32 v69, v58")
    e("v_and_b32 v227, 127, v0")
    e("v_cmp_eq_u32 vcc, 0, v227")
    e("s_and_saveexec_b64 s[30:31], vcc")
    e("buffer_store_dwordx2 v[68:69], v226, s[16:19], 0 offen")
    e("s_mov_b64 exec, s[30:31]")
    e("s_waitcnt vmcnt(0)")
    L.append("L_a_done:")
    e("s_endpgm")

def k_oproj():
    kstart("oproj_kernel")
    e("s_cmp_ge_u32 s2, 256")
    e("s_cbranch_scc1 L_o_done")
    e("s_lshr_b32 s3, s2, 7")
    e("s_mul_i32 s4, s3, 40")
    e("s_add_u32 s5, s4, 32")
    e("s_load_dwordx2 s[12:13], s[0:1], s5")
    e("s_load_dwordx2 s[16:17], s[0:1], 96")
    e("s_load_dwordx2 s[8:9], s[0:1], 80")
    e("s_load_dwordx2 s[32:33], s[0:1], 88")
    e("s_lshr_b32 s4, s2, 5")
    e("s_and_b32 s4, s4, 3")
    e("s_and_b32 s5, s2, 31")
    e("v_and_b32 v1, 63, v0")
    e("v_lshrrev_b32 v2, 6, v0")
    e("v_and_b32 v3, 15, v1")
    e("v_lshrrev_b32 v4, 4, v1")
    e("v_lshlrev_b32 v5, 15, v2")
    e("v_lshlrev_b32 v6, 13, v4")
    e("v_add_u32 v5, v5, v6")
    e("v_lshlrev_b32 v6, 4, v3")
    e("v_add_u32 v5, v5, v6")
    e("s_lshl_b32 s7, s5, 17")
    e("s_lshl_b32 s20, s4, 8")
    e("s_add_u32 s7, s7, s20")
    e("v_add_u32 v5, s7, v5")
    e("s_mov_b32 s20, 0")
    e("s_mov_b32 s21, 0x1000")
    e("v_and_b32 v6, 3, v1")
    e("v_lshlrev_b32 v7, 10, v6")
    e("s_lshl_b32 s7, s3, 12")
    e("s_lshl_b32 s22, s5, 5")
    e("s_add_u32 s7, s7, s22")
    e("s_add_u32 s7, s7, 0x%x" % ML_OFF)
    e("v_add_u32 v7, s7, v7")
    e("v_lshlrev_b32 v8, 16, v6")
    e("v_lshlrev_b32 v9, 7, v2")
    e("v_add_u32 v8, v8, v9")
    e("v_lshlrev_b32 v9, 5, v4")
    e("v_add_u32 v8, v8, v9")
    e("s_lshl_b32 s7, s3, 18")
    e("s_lshl_b32 s22, s5, 11")
    e("s_add_u32 s7, s7, s22")
    e("s_add_u32 s7, s7, 0x%x" % ACC_OFF)
    e("v_add_u32 v8, s7, v8")
    e("s_mov_b32 s28, 0x05040100")
    e("s_mov_b32 s29, 0x07060302")
    e("s_mov_b32 s24, %s" % f32hex(CEXP))
    e("s_waitcnt lgkmcnt(0)")
    srd(12, 12, 0x400000)
    srd(16, 16, WS_SIZE)
    srd(8, 8, 8192)
    srd(32, 32, 256)
    WB = 12
    for jj in range(8):
        e("buffer_load_dwordx4 v[%d:%d], v5, s[12:15], s%d offen offset:%d nt" % (WB + 4 * jj, WB + 4 * jj + 3, 20 + (jj >> 2), (jj & 3) * 1024))
    e("buffer_load_dwordx4 v[44:47], v7, s[16:19], 0 offen")
    e("buffer_load_dwordx4 v[48:51], v7, s[16:19], 0 offen offset:16")
    for s in range(4):
        e("buffer_load_dwordx4 v[%d:%d], v8, s[16:19], 0 offen offset:%d" % (52 + 8 * s, 55 + 8 * s, s * 512))
        e("buffer_load_dwordx4 v[%d:%d], v8, s[16:19], 0 offen offset:%d" % (56 + 8 * s, 59 + 8 * s, s * 512 + 16))
    e("s_waitcnt vmcnt(0)")
    e("v_max3_f32 v84, v44, v46, v48")
    e("v_max_f32 v84, v84, v50")
    e("v_mul_f32 v85, s24, v84")
    e("v_sub_f32 v85, 0, v85")
    for s in range(4):
        e("v_fma_f32 v%d, v%d, s24, v85" % (86 + s, 44 + 2 * s))
    for s in range(4):
        e("v_exp_f32 v%d, v%d" % (86 + s, 86 + s))
    e("s_nop 1")
    e("v_mul_f32 v90, v86, v45")
    for s in range(1, 4):
        e("v_fma_f32 v90, v%d, v%d, v90" % (86 + s, 45 + 2 * s))
    e("v_rcp_f32 v90, v90")
    e("s_nop 1")
    for s in range(4):
        e("v_mul_f32 v%d, v%d, v90" % (86 + s, 86 + s))
    for jj in range(8):
        e("v_mul_f32 v%d, v86, v%d" % (92 + jj, 52 + jj))
        for s in range(1, 4):
            e("v_fma_f32 v%d, v%d, v%d, v%d" % (92 + jj, 86 + s, 52 + 8 * s + jj, 92 + jj))
    for m in range(4):
        e("v_cvt_pk_bf16_f32 v%d, v%d, v%d" % (100 + m, 92 + 2 * m, 93 + 2 * m))
    for w in range(4):
        for ee in range(2):
            c = 2 * w + ee
            t = 104 + 4 * (c & 1)
            for m in range(4):
                e("v_perm_b32 v%d, v%d, v%d, s%d" % (t + m, WB + 4 * (2 * m + 1) + w, WB + 4 * (2 * m) + w, 28 + ee))
            e("s_nop 1")
            e("v_mfma_f32_16x16x32_bf16 v[%d:%d], v[100:103], v[%d:%d], 0" % (112 + 4 * c, 115 + 4 * c, t, t + 3))
    e("s_nop 7")
    e("s_nop 3")
    e("v_lshlrev_b32 v6, 11, v2")
    e("v_lshlrev_b32 v7, 5, v3")
    e("v_add_u32 v6, v6, v7")
    e("v_cmp_gt_u32 vcc, 16, v1")
    e("s_and_saveexec_b64 s[30:31], vcc")
    for c in range(8):
        for r in range(4):
            e("ds_write_b32 v6, v%d offset:%d" % (112 + 4 * c + r, r * 512 + c * 4))
    e("s_mov_b64 exec, s[30:31]")
    e("s_waitcnt lgkmcnt(0)")
    e("s_barrier")
    e("v_lshlrev_b32 v6, 3, v0")
    for w in range(4):
        e("ds_read_b64 v[%d:%d], v6 offset:%d" % (12 + 2 * w, 13 + 2 * w, w * 2048))
    e("s_waitcnt lgkmcnt(0)")
    e("v_add_f32 v12, v12, v14")
    e("v_add_f32 v13, v13, v15")
    e("v_add_f32 v12, v12, v16")
    e("v_add_f32 v13, v13, v17")
    e("v_add_f32 v12, v12, v18")
    e("v_add_f32 v13, v13, v19")
    e("s_lshl_b32 s7, s3, 2")
    e("s_add_u32 s7, s7, s4")
    e("s_lshl_b32 s22, s7, 16")
    e("s_add_u32 s22, s22, 0x%x" % P3_OFF)
    e("s_lshl_b32 s23, s5, 11")
    e("s_add_u32 s23, s23, s22")
    e("v_add_u32 v7, s23, v6")
    e("buffer_store_dwordx2 v[12:13], v7, s[16:19], 0 offen sc0 sc1")
    e("s_waitcnt vmcnt(0)")
    e("s_barrier")
    e("v_cmp_eq_u32 vcc, 0, v0")
    e("s_and_saveexec_b64 s[30:31], vcc")
    e("v_mov_b32 v14, 1")
    e("s_lshl_b32 s25, s7, 4")
    e("v_mov_b32 v15, s25")
    e("buffer_atomic_add v14, v15, s[32:35], 0 offen sc0 sc1")
    e("s_waitcnt vmcnt(0)")
    e("v_mov_b32 v16, 0x2000")
    e("ds_write_b32 v16, v14")
    e("s_mov_b64 exec, s[30:31]")
    e("s_waitcnt lgkmcnt(0)")
    e("s_barrier")
    e("v_mov_b32 v16, 0x2000")
    e("ds_read_b32 v14, v16")
    e("s_waitcnt lgkmcnt(0)")
    e("v_readfirstlane_b32 s26, v14")
    e("s_cmp_lg_u32 s26, 31")
    e("s_cbranch_scc1 L_o_done")
    e("v_add_u32 v7, s22, v6")
    for hh in range(32):
        e("buffer_load_dwordx2 v[%d:%d], v7, s[16:19], 0 offen offset:%d sc0 sc1" % (20 + 2 * hh, 21 + 2 * hh, 0) if hh == 0 else
          "buffer_load_dwordx2 v[%d:%d], v7, s[16:19], s%d offen sc0 sc1" % (20 + 2 * hh, 21 + 2 * hh, 36 + hh))
    e("s_waitcnt vmcnt(0)")
    for hh in range(1, 32):
        e("v_add_f32 v20, v20, v%d" % (20 + 2 * hh))
        e("v_add_f32 v21, v21, v%d" % (21 + 2 * hh))
    e("v_cvt_pk_bf16_f32 v20, v20, v21")
    e("v_lshrrev_b32 v8, 6, v0")
    e("v_lshlrev_b32 v8, 11, v8")
    e("v_and_b32 v9, 63, v0")
    e("v_lshlrev_b32 v9, 2, v9")
    e("v_add_u32 v8, v8, v9")
    e("s_lshl_b32 s25, s3, 10")
    e("s_lshl_b32 s26, s4, 8")
    e("s_add_u32 s25, s25, s26")
    e("v_add_u32 v8, s25, v8")
    e("buffer_store_dword v20, v8, s[8:11], 0 offen")
    e("s_waitcnt vmcnt(0)")
    L.append("L_o_done:")
    e("s_endpgm")

def fixup_oproj_soffsets():
    idx = next(i for i, l in enumerate(L) if "v_cmp_eq_u32 vcc, 0, v0" in l)
    ins = ["    s_mov_b32 s%d, 0x%x" % (36 + hh, hh * 2048) for hh in range(1, 32)]
    L[idx:idx] = ins

header()
k_qproj()
k_attn()
k_oproj()
fixup_oproj_soffsets()
kdesc("qproj_kernel", 84, 40)
kdesc(NAME + "_kernel", 228, 40)
kdesc("oproj_kernel", 144, 72)
open(OUT, "w").write("\n".join(L) + "\n")
print("wrote", OUT, len(L), "lines")
```

```python
import struct, math
NAME = "concat_heads__sliding_block_cached__sliding_block_cached__decode"
OUT = "cdna_kernels/%s.s" % NAME
WS_SIZE = 285220864
ACC_OFF = 0x10000; ML_OFF = 0x90000; P3_OFF = 0xA0000
LDS_A = 0; LDS_Q = 4096; LDS_B = 8192; LDS_ML = LDS_B + 16384; LDS_C = LDS_ML + 256; LDS_F = LDS_C + 8192
LDS_TOT = LDS_F + 64
def f32hex(x): return "0x%08x" % struct.unpack("<I", struct.pack("<f", x))[0]
CEXP = (128 ** -0.5) * math.log2(math.e)
L = []
def e(s): L.append("    " + s)
def lab(s): L.append(s + ":")
def srd(d, size):
    e("s_mov_b32 s%d, 0x%x" % (d + 2, size)); e("s_mov_b32 s%d, 0x00020000" % (d + 3))

L.append(open("cdna_kernels/%s.s.ref" % NAME).read().split("; Override launch")[0].rstrip())
L.append("; @launch grid=(256,1,1) block=(512,1,1) lds=%d" % LDS_TOT)
L.append('.amdgcn_target "amdgcn-amd-amdhsa--gfx950"')
L.append(".text")
L.append(".globl %s_kernel" % NAME); L.append(".p2align 8"); L.append(".type %s_kernel,@function" % NAME)
lab(NAME + "_kernel")
e("s_cmp_ge_u32 s2, 256"); e("s_cbranch_scc1 L_done")
e("s_lshr_b32 s3, s2, 7"); e("s_mul_i32 s4, s3, 40")
e("s_load_dwordx2 s[36:37], s[0:1], s4")
e("s_add_u32 s5, s4, 8");  e("s_load_dwordx2 s[8:9], s[0:1], s5")
e("s_add_u32 s5, s4, 16"); e("s_load_dwordx2 s[12:13], s[0:1], s5")
e("s_add_u32 s5, s4, 24"); e("s_load_dwordx2 s[40:41], s[0:1], s5")
e("s_add_u32 s5, s4, 32"); e("s_load_dwordx2 s[44:45], s[0:1], s5")
e("s_load_dwordx2 s[16:17], s[0:1], 96")
e("s_load_dwordx2 s[48:49], s[0:1], 80")
e("s_load_dwordx2 s[52:53], s[0:1], 88")
e("s_lshr_b32 s4, s2, 5"); e("s_and_b32 s4, s4, 3")
e("s_lshr_b32 s5, s2, 2"); e("s_and_b32 s5, s5, 7")
e("s_and_b32 s6, s2, 3")
e("s_lshl_b32 s56, s4, 2"); e("s_add_u32 s56, s56, s6")
e("s_lshl_b32 s57, s3, 3"); e("s_add_u32 s57, s57, s5")
e("v_and_b32 v1, 63, v0"); e("v_lshrrev_b32 v2, 6, v0"); e("v_and_b32 v3, 15, v1"); e("v_lshrrev_b32 v4, 4, v1")
e("v_readfirstlane_b32 s58, v2")
e("v_lshlrev_b32 v5, 8, v3"); e("v_lshlrev_b32 v6, 4, v4"); e("v_add_u32 v5, v5, v6"); e("v_lshlrev_b32 v6, 14, v2"); e("v_add_u32 v5, v5, v6")
e("v_lshlrev_b32 v7, 10, v4"); e("v_lshlrev_b32 v8, 4, v3"); e("v_add_u32 v7, v7, v8"); e("v_add_u32 v7, v7, v6")
e("v_lshlrev_b32 v8, 19, v2"); e("v_lshlrev_b32 v9, 16, v4"); e("v_add_u32 v8, v8, v9"); e("v_lshlrev_b32 v9, 2, v3"); e("v_add_u32 v8, v8, v9")
e("s_lshl_b32 s7, s5, 10"); e("s_lshl_b32 s20, s56, 6"); e("s_add_u32 s7, s7, s20"); e("v_add_u32 v8, s7, v8")
e("v_and_b32 v9, 3, v1"); e("v_lshlrev_b32 v9, 10, v9"); e("v_lshlrev_b32 v10, 7, v2"); e("v_add_u32 v9, v9, v10"); e("v_lshlrev_b32 v10, 4, v4"); e("v_add_u32 v9, v9, v10")
e("s_lshr_b32 s59, s56, 2"); e("s_lshl_b32 s20, s5, 2"); e("s_add_u32 s59, s59, s20")
e("s_and_b32 s60, s56, 3")
e("v_and_b32 v10, 3, v2"); e("v_lshlrev_b32 v10, 15, v10"); e("v_lshlrev_b32 v11, 13, v4"); e("v_add_u32 v10, v10, v11"); e("v_lshlrev_b32 v11, 4, v3"); e("v_add_u32 v10, v10, v11")
e("s_lshl_b32 s7, s59, 17"); e("s_lshl_b32 s20, s60, 8"); e("s_add_u32 s7, s7, s20"); e("v_add_u32 v10, s7, v10")
e("s_lshl_b32 s20, s4, 3"); e("s_add_u32 s20, s20, s5"); e("s_lshl_b32 s20, s20, 21"); e("s_lshl_b32 s21, s6, 17"); e("s_add_u32 s20, s20, s21"); e("s_add_u32 s20, s20, 0x180000")
e("s_add_u32 s21, s20, 0x1000"); e("s_add_u32 s22, s20, 0x2000"); e("s_add_u32 s23, s20, 0x3000")
e("s_mov_b32 s28, 0x05040100"); e("s_mov_b32 s29, 0x07060302"); e("s_mov_b32 s24, %s" % f32hex(CEXP))
for jj in range(16): e("s_mov_b32 s%d, 0x%x" % (64 + jj, jj * 8192))
e("s_mov_b32 s80, 0"); e("s_mov_b32 s81, 0x1000")
e("s_waitcnt lgkmcnt(0)")
srd(36, 4096); srd(8, 0x4000000); srd(12, 0x4000000); srd(40, 0x400000); srd(44, 0x400000); srd(16, WS_SIZE); srd(48, 8192); srd(52, 256)
QB, KB, VB, SB, PB, AB, TB, WB = 16, 32, 96, 160, 176, 184, 216, 224
for tl in range(2):
    e("buffer_load_dwordx4 v[%d:%d], v9, s[36:39], 0 offen offset:%d" % (176 + 4 * tl, 179 + 4 * tl, tl * 64))
for tl in range(2):
    for jj in range(8):
        e("buffer_load_dword v%d, v8, s[40:43], s%d offen nt" % (160 + 8 * tl + jj, 64 + tl * 0 + jj) if tl == 0 else
          "buffer_load_dword v%d, v8, s[40:43], s%d offen nt" % (160 + 8 * tl + jj, 82 + jj))
def kv_loads():
    for t in range(4):
        for c in range(4):
            r = KB + t * 16 + c * 4
            e("buffer_load_dwordx4 v[%d:%d], v5, s[8:11], s%d offen offset:%d nt" % (r, r + 3, 20 + t, c * 64))
    for g in range(2):
        for jj in range(8):
            r = VB + g * 32 + jj * 4
            e("buffer_load_dwordx4 v[%d:%d], v7, s[12:15], s%d offen offset:%d nt" % (r, r + 3, 20 + 2 * g + (jj >> 2), (jj & 3) * 256))
    for jj in range(8):
        e("buffer_load_dwordx4 v[%d:%d], v10, s[44:47], s%d offen offset:%d nt" % (WB + 4 * jj, WB + 4 * jj + 3, 80 + (jj >> 2), (jj & 3) * 1024))
e("s_cmp_eq_u32 s58, 0"); e("s_cbranch_scc1 L_skipkv0")
kv_loads()
lab("L_skipkv0")
e("s_cmp_eq_u32 s58, 0"); e("s_cbranch_scc1 L_w0wait")
e("s_waitcnt vmcnt(40)"); e("s_branch L_acomp")
lab("L_w0wait"); e("s_waitcnt vmcnt(0)")
lab("L_acomp")
for tl in range(2):
    for ee in range(2):
        for m in range(4):
            e("v_perm_b32 v%d, v%d, v%d, s%d" % (TB + m, 160 + 8 * tl + 2 * m + 1, 160 + 8 * tl + 2 * m, 28 + ee))
        e("s_nop 1")
        src = "0" if tl == 0 else "v[%d:%d]" % (AB + 4 * ee, AB + 4 * ee + 3)
        e("v_mfma_f32_16x16x32_bf16 v[%d:%d], v[%d:%d], v[%d:%d], %s" % (AB + 4 * ee, AB + 4 * ee + 3, 176 + 4 * tl, 179 + 4 * tl, TB, TB + 3, src))
        e("s_nop 7")
e("s_nop 7"); e("s_nop 3")
e("v_lshlrev_b32 v11, 9, v2"); e("v_lshlrev_b32 v12, 3, v3"); e("v_add_u32 v11, v11, v12")
e("v_cmp_gt_u32 vcc, 16, v1"); e("s_and_saveexec_b64 s[30:31], vcc")
for ee in range(2):
    for r in range(4): e("ds_write_b32 v11, v%d offset:%d" % (AB + 4 * ee + r, LDS_A + r * 128 + ee * 4))
e("s_mov_b64 exec, s[30:31]"); e("s_waitcnt lgkmcnt(0)"); e("s_barrier")
e("s_cmp_lg_u32 s58, 0"); e("s_cbranch_scc1 L_waitq")
e("v_lshlrev_b32 v11, 3, v1")
for w in range(8): e("ds_read_b64 v[%d:%d], v11 offset:%d" % (160 + 2 * w, 161 + 2 * w, LDS_A + w * 512))
e("s_waitcnt lgkmcnt(0)")
for w in range(1, 8):
    e("v_add_f32 v160, v160, v%d" % (160 + 2 * w)); e("v_add_f32 v161, v161, v%d" % (161 + 2 * w))
e("v_cvt_pk_bf16_f32 v160, v160, v161")
e("v_lshlrev_b32 v12, 13, v4"); e("v_lshlrev_b32 v13, 2, v3"); e("v_add_u32 v12, v12, v13")
e("s_lshl_b32 s7, s3, 15"); e("s_lshl_b32 s25, s5, 10"); e("s_add_u32 s7, s7, s25"); e("s_lshl_b32 s25, s56, 6"); e("s_add_u32 s7, s7, s25"); e("v_add_u32 v12, s7, v12")
e("buffer_store_dword v160, v12, s[16:19], 0 offen sc0 sc1")
e("s_waitcnt vmcnt(0)")
e("v_mov_b32 v13, 1"); e("s_lshl_b32 s25, s57, 2"); e("v_mov_b32 v14, s25")
e("v_cmp_eq_u32 vcc, 0, v1"); e("s_and_saveexec_b64 s[30:31], vcc")
e("buffer_atomic_add v13, v14, s[52:55], 0 offen sc1")
e("s_mov_b64 exec, s[30:31]")
e("s_mov_b32 s61, 0")
lab("L_pollA")
e("buffer_load_dword v13, v14, s[52:55], 0 offen sc0 sc1"); e("s_waitcnt vmcnt(0)")
e("v_readfirstlane_b32 s26, v13"); e("s_cmp_ge_u32 s26, 16"); e("s_cbranch_scc1 L_pollA_ok")
e("s_sleep 1"); e("s_add_u32 s61, s61, 1"); e("s_cmp_lt_u32 s61, 0x40000"); e("s_cbranch_scc1 L_pollA")
lab("L_pollA_ok")
e("v_and_b32 v12, 3, v1"); e("v_lshlrev_b32 v12, 8, v12"); e("v_lshlrev_b32 v13, 4, v4"); e("v_add_u32 v12, v12, v13")
e("s_lshl_b32 s7, s3, 15"); e("s_lshl_b32 s25, s4, 13"); e("s_add_u32 s7, s7, s25"); e("s_lshl_b32 s25, s5, 10"); e("s_add_u32 s7, s7, s25"); e("v_add_u32 v12, s7, v12")
for c in range(4): e("buffer_load_dwordx4 v[%d:%d], v12, s[16:19], 0 offen offset:%d sc0 sc1" % (QB + 4 * c, QB + 4 * c + 3, c * 64))
e("s_waitcnt vmcnt(0)")
e("v_lshlrev_b32 v13, 4, v1")
for c in range(4): e("ds_write_b128 v13, v[%d:%d] offset:%d" % (QB + 4 * c, QB + 4 * c + 3, LDS_Q + c * 1024))
e("s_waitcnt lgkmcnt(0)")
e("s_barrier")
kv_loads()
e("s_branch L_qk")
lab("L_waitq")
e("s_barrier")
e("v_lshlrev_b32 v13, 4, v1")
for c in range(4): e("ds_read_b128 v[%d:%d], v13 offset:%d" % (QB + 4 * c, QB + 4 * c + 3, LDS_Q + c * 1024))
e("s_waitcnt lgkmcnt(0)")
lab("L_qk")
for t in range(4):
    e("s_waitcnt vmcnt(%d)" % (40 - 4 * (t + 1)))
    for c in range(4):
        r = KB + t * 16 + c * 4
        src = "0" if c == 0 else "v[%d:%d]" % (SB + 4 * t, SB + 4 * t + 3)
        e("v_mfma_f32_16x16x32_bf16 v[%d:%d], v[%d:%d], v[%d:%d], %s" % (SB + 4 * t, SB + 4 * t + 3, r, r + 3, QB + 4 * c, QB + 4 * c + 3, src))
e("s_nop 7"); e("s_nop 3")
e("v_max3_f32 v10, v%d, v%d, v%d" % (SB, SB + 1, SB + 2))
for i in range(3, 15, 2): e("v_max3_f32 v10, v10, v%d, v%d" % (SB + i, SB + i + 1))
e("v_max_f32 v10, v10, v%d" % (SB + 15))
e("v_lshlrev_b32 v11, 2, v1"); e("v_xor_b32 v12, 64, v11")
e("ds_bpermute_b32 v13, v12, v10"); e("s_waitcnt lgkmcnt(0)"); e("v_max_f32 v10, v10, v13")
e("v_xor_b32 v14, 0x80, v11")
e("ds_bpermute_b32 v13, v14, v10"); e("s_waitcnt lgkmcnt(0)"); e("v_max_f32 v10, v10, v13")
e("v_mul_f32 v15, s24, v10"); e("v_sub_f32 v15, 0, v15")
for i in range(16): e("v_fma_f32 v%d, v%d, s24, v15" % (SB + i, SB + i))
for i in range(16): e("v_exp_f32 v%d, v%d" % (SB + i, SB + i))
e("s_nop 1")
e("v_add_f32 v13, v%d, v%d" % (SB, SB + 1))
for i in range(2, 16): e("v_add_f32 v13, v13, v%d" % (SB + i))
for i in range(8): e("v_cvt_pk_bf16_f32 v%d, v%d, v%d" % (PB + i, SB + 2 * i, SB + 2 * i + 1))
e("ds_bpermute_b32 v9, v12, v13"); e("s_waitcnt lgkmcnt(0)"); e("v_add_f32 v13, v13, v9")
e("ds_bpermute_b32 v9, v14, v13"); e("s_waitcnt lgkmcnt(0)"); e("v_add_f32 v13, v13, v9")
for g in range(2):
    e("s_waitcnt vmcnt(%d)" % (40 - 16 - 8 * (g + 1)))
    for w in range(4):
        for ee in range(2):
            c = 2 * w + ee; t = TB + 4 * (c & 1)
            for m in range(4):
                e("v_perm_b32 v%d, v%d, v%d, s%d" % (t + m, VB + g * 32 + (2 * m + 1) * 4 + w, VB + g * 32 + (2 * m) * 4 + w, 28 + ee))
            e("s_nop 1")
            src = "0" if g == 0 else "v[%d:%d]" % (AB + 4 * c, AB + 4 * c + 3)
            e("v_mfma_f32_16x16x32_bf16 v[%d:%d], v[%d:%d], v[%d:%d], %s" % (AB + 4 * c, AB + 4 * c + 3, t, t + 3, PB + 4 * g, PB + 4 * g + 3, src))
e("s_nop 7"); e("s_nop 3")
e("v_lshlrev_b32 v8, 11, v2"); e("v_lshlrev_b32 v9, 9, v3"); e("v_add_u32 v8, v8, v9"); e("v_lshlrev_b32 v9, 7, v4"); e("v_add_u32 v8, v8, v9")
e("v_cmp_gt_u32 vcc, 4, v3"); e("s_and_saveexec_b64 s[30:31], vcc")
for c in range(8):
    for r in range(4): e("ds_write_b32 v8, v%d offset:%d" % (AB + 4 * c + r, LDS_B + r * 32 + c * 4))
e("s_mov_b64 exec, s[30:31]")
e("v_lshlrev_b32 v8, 5, v2"); e("v_lshlrev_b32 v9, 3, v1"); e("v_add_u32 v8, v8, v9")
e("v_mov_b32 v16, v10"); e("v_mov_b32 v17, v13")
e("v_cmp_gt_u32 vcc, 4, v1"); e("s_and_saveexec_b64 s[30:31], vcc")
e("ds_write_b64 v8, v[16:17] offset:%d" % LDS_ML)
e("s_mov_b64 exec, s[30:31]"); e("s_waitcnt lgkmcnt(0)"); e("s_barrier")
e("v_lshrrev_b32 v8, 7, v0"); e("v_lshlrev_b32 v9, 3, v8")
for w in range(8): e("ds_read_b64 v[%d:%d], v9 offset:%d" % (32 + 2 * w, 33 + 2 * w, LDS_ML + w * 32))
e("v_lshlrev_b32 v11, 9, v8"); e("v_and_b32 v12, 127, v0"); e("v_lshlrev_b32 v12, 2, v12"); e("v_add_u32 v11, v11, v12")
for w in range(8): e("ds_read_b32 v%d, v11 offset:%d" % (48 + w, LDS_B + w * 2048))
e("s_waitcnt lgkmcnt(0)")
e("v_max3_f32 v56, v32, v34, v36"); e("v_max3_f32 v56, v56, v38, v40"); e("v_max3_f32 v56, v56, v42, v44"); e("v_max_f32 v56, v56, v46")
e("v_mul_f32 v57, s24, v56"); e("v_sub_f32 v57, 0, v57")
for w in range(8): e("v_fma_f32 v%d, v%d, s24, v57" % (60 + w, 32 + 2 * w))
for w in range(8): e("v_exp_f32 v%d, v%d" % (60 + w, 60 + w))
e("s_nop 1")
e("v_mul_f32 v58, v60, v33"); e("v_mul_f32 v59, v60, v48")
for w in range(1, 8):
    e("v_fma_f32 v58, v%d, v%d, v58" % (60 + w, 33 + 2 * w)); e("v_fma_f32 v59, v%d, v%d, v59" % (60 + w, 48 + w))
e("s_lshl_b32 s7, s3, 2"); e("s_add_u32 s7, s7, s4"); e("s_lshl_b32 s7, s7, 5"); e("s_lshl_b32 s25, s5, 2"); e("s_add_u32 s7, s7, s25"); e("s_lshl_b32 s7, s7, 2"); e("s_add_u32 s7, s7, s6")
e("s_lshl_b32 s25, s7, 9"); e("s_add_u32 s25, s25, 0x%x" % ACC_OFF)
e("v_lshlrev_b32 v11, 11, v8"); e("v_add_u32 v11, v11, v12"); e("v_add_u32 v11, s25, v11")
e("buffer_store_dword v59, v11, s[16:19], 0 offen sc0 sc1")
e("s_lshl_b32 s25, s7, 3"); e("s_add_u32 s25, s25, 0x%x" % ML_OFF)
e("v_lshlrev_b32 v11, 5, v8"); e("v_add_u32 v11, s25, v11")
e("v_mov_b32 v68, v56"); e("v_mov_b32 v69, v58")
e("v_and_b32 v12, 127, v0"); e("v_cmp_eq_u32 vcc, 0, v12"); e("s_and_saveexec_b64 s[30:31], vcc")
e("buffer_store_dwordx2 v[68:69], v11, s[16:19], 0 offen sc0 sc1")
e("s_mov_b64 exec, s[30:31]")
e("s_waitcnt vmcnt(0)"); e("s_barrier")
e("s_cmp_lg_u32 s58, 0"); e("s_cbranch_scc1 L_waitB")
e("v_mov_b32 v13, 1"); e("s_lshl_b32 s25, s57, 2"); e("s_add_u32 s25, s25, 64"); e("v_mov_b32 v14, s25")
e("v_cmp_eq_u32 vcc, 0, v1"); e("s_and_saveexec_b64 s[30:31], vcc")
e("buffer_atomic_add v13, v14, s[52:55], 0 offen sc1")
e("s_mov_b64 exec, s[30:31]"); e("s_mov_b32 s61, 0")
lab("L_pollB")
e("buffer_load_dword v13, v14, s[52:55], 0 offen sc0 sc1"); e("s_waitcnt vmcnt(0)")
e("v_readfirstlane_b32 s26, v13"); e("s_cmp_ge_u32 s26, 16"); e("s_cbranch_scc1 L_waitB")
e("s_sleep 1"); e("s_add_u32 s61, s61, 1"); e("s_cmp_lt_u32 s61, 0x40000"); e("s_cbranch_scc1 L_pollB")
lab("L_waitB")
e("s_barrier")
e("s_cmp_ge_u32 s58, 4"); e("s_cbranch_scc1 L_cskip")
e("v_and_b32 v6, 3, v1"); e("v_lshlrev_b32 v7, 10, v6")
e("s_lshl_b32 s7, s3, 12"); e("s_lshl_b32 s22, s59, 5"); e("s_add_u32 s7, s7, s22"); e("s_add_u32 s7, s7, 0x%x" % ML_OFF); e("v_add_u32 v7, s7, v7")
e("v_lshlrev_b32 v8, 16, v6"); e("v_lshlrev_b32 v9, 7, v2"); e("v_add_u32 v8, v8, v9"); e("v_lshlrev_b32 v9, 5, v4"); e("v_add_u32 v8, v8, v9")
e("s_lshl_b32 s7, s3, 18"); e("s_lshl_b32 s22, s59, 11"); e("s_add_u32 s7, s7, s22"); e("s_add_u32 s7, s7, 0x%x" % ACC_OFF); e("v_add_u32 v8, s7, v8")
e("buffer_load_dwordx4 v[44:47], v7, s[16:19], 0 offen sc0 sc1"); e("buffer_load_dwordx4 v[48:51], v7, s[16:19], 0 offen offset:16 sc0 sc1")
for s in range(4):
    e("buffer_load_dwordx4 v[%d:%d], v8, s[16:19], 0 offen offset:%d sc0 sc1" % (52 + 8 * s, 55 + 8 * s, s * 512))
    e("buffer_load_dwordx4 v[%d:%d], v8, s[16:19], 0 offen offset:%d sc0 sc1" % (56 + 8 * s, 59 + 8 * s, s * 512 + 16))
e("s_waitcnt vmcnt(0)")
e("v_max3_f32 v84, v44, v46, v48"); e("v_max_f32 v84, v84, v50"); e("v_mul_f32 v85, s24, v84"); e("v_sub_f32 v85, 0, v85")
for s in range(4): e("v_fma_f32 v%d, v%d, s24, v85" % (86 + s, 44 + 2 * s))
for s in range(4): e("v_exp_f32 v%d, v%d" % (86 + s, 86 + s))
e("s_nop 1"); e("v_mul_f32 v90, v86, v45")
for s in range(1, 4): e("v_fma_f32 v90, v%d, v%d, v90" % (86 + s, 45 + 2 * s))
e("v_rcp_f32 v90, v90"); e("s_nop 1")
for s in range(4): e("v_mul_f32 v%d, v%d, v90" % (86 + s, 86 + s))
for jj in range(8):
    e("v_mul_f32 v%d, v86, v%d" % (92 + jj, 52 + jj))
    for s in range(1, 4): e("v_fma_f32 v%d, v%d, v%d, v%d" % (92 + jj, 86 + s, 52 + 8 * s + jj, 92 + jj))
for m in range(4): e("v_cvt_pk_bf16_f32 v%d, v%d, v%d" % (100 + m, 92 + 2 * m, 93 + 2 * m))
for w in range(4):
    for ee in range(2):
        c = 2 * w + ee; t = 104 + 4 * (c & 1)
        for m in range(4): e("v_perm_b32 v%d, v%d, v%d, s%d" % (t + m, WB + 4 * (2 * m + 1) + w, WB + 4 * (2 * m) + w, 28 + ee))
        e("s_nop 1")
        e("v_mfma_f32_16x16x32_bf16 v[%d:%d], v[100:103], v[%d:%d], 0" % (112 + 4 * c, 115 + 4 * c, t, t + 3))
e("s_nop 7"); e("s_nop 3")
e("v_lshlrev_b32 v6, 11, v2"); e("v_lshlrev_b32 v7, 5, v3"); e("v_add_u32 v6, v6, v7")
e("v_cmp_gt_u32 vcc, 16, v1"); e("s_and_saveexec_b64 s[30:31], vcc")
for c in range(8):
    for r in range(4): e("ds_write_b32 v6, v%d offset:%d" % (112 + 4 * c + r, LDS_C + r * 512 + c * 4))
e("s_mov_b64 exec, s[30:31]")
lab("L_cskip")
e("s_waitcnt lgkmcnt(0)"); e("s_barrier")
e("v_lshlrev_b32 v6, 2, v0")
for w in range(4): e("ds_read_b32 v%d, v6 offset:%d" % (12 + w, LDS_C + w * 2048))
e("s_waitcnt lgkmcnt(0)")
e("v_add_f32 v12, v12, v13"); e("v_add_f32 v12, v12, v14"); e("v_add_f32 v12, v12, v15")
e("s_lshl_b32 s7, s3, 2"); e("s_add_u32 s7, s7, s60"); e("s_lshl_b32 s22, s7, 16"); e("s_add_u32 s22, s22, 0x%x" % P3_OFF)
e("s_lshl_b32 s23, s59, 11"); e("s_add_u32 s23, s23, s22"); e("v_add_u32 v7, s23, v6")
e("buffer_store_dword v12, v7, s[16:19], 0 offen sc0 sc1")
e("s_waitcnt vmcnt(0)"); e("s_barrier")
e("v_cmp_eq_u32 vcc, 0, v0"); e("s_and_saveexec_b64 s[30:31], vcc")
e("v_mov_b32 v14, 1"); e("s_lshl_b32 s25, s7, 2"); e("s_add_u32 s25, s25, 128"); e("v_mov_b32 v15, s25")
e("buffer_atomic_add v14, v15, s[52:55], 0 offen sc0 sc1"); e("s_waitcnt vmcnt(0)")
e("v_mov_b32 v16, %d" % LDS_F); e("ds_write_b32 v16, v14")
e("s_mov_b64 exec, s[30:31]"); e("s_waitcnt lgkmcnt(0)"); e("s_barrier")
e("v_mov_b32 v16, %d" % LDS_F); e("ds_read_b32 v14, v16"); e("s_waitcnt lgkmcnt(0)")
e("v_readfirstlane_b32 s26, v14"); e("s_cmp_lg_u32 s26, 31"); e("s_cbranch_scc1 L_done")
e("v_add_u32 v7, s22, v6")
for hh in range(32):
    e("s_mov_b32 s27, 0x%x" % (hh * 2048)); e("buffer_load_dword v%d, v7, s[16:19], s27 offen sc0 sc1" % (20 + hh))
e("s_waitcnt vmcnt(0)")
for hh in range(1, 32): e("v_add_f32 v20, v20, v%d" % (20 + hh))
e("v_cvt_pk_bf16_f32 v20, v20, v20")
e("v_lshrrev_b32 v8, 7, v0"); e("v_lshlrev_b32 v8, 11, v8"); e("v_and_b32 v9, 127, v0"); e("v_lshlrev_b32 v9, 1, v9"); e("v_add_u32 v8, v8, v9")
e("s_lshl_b32 s25, s3, 10"); e("s_lshl_b32 s26, s60, 8"); e("s_add_u32 s25, s25, s26"); e("v_add_u32 v8, s25, v8")
e("buffer_store_short v20, v8, s[48:51], 0 offen"); e("s_waitcnt vmcnt(0)")
lab("L_done"); e("s_endpgm")
L.append('.section .rodata,"a"'); L.append(".p2align 6"); L.append(".amdhsa_kernel %s_kernel" % NAME)
L += ["  .amdhsa_next_free_vgpr 256", "  .amdhsa_next_free_sgpr 100", "  .amdhsa_accum_offset 256", "  .amdhsa_group_segment_fixed_size 0",
      "  .amdhsa_kernarg_size 104", "  .amdhsa_user_sgpr_count 2", "  .amdhsa_user_sgpr_kernarg_segment_ptr 1", "  .amdhsa_system_sgpr_workgroup_id_x 1", ".end_amdhsa_kernel"]
idx = next(i for i, l in enumerate(L) if "s_mov_b32 s80, 0" in l)
L[idx:idx] = ["    s_mov_b32 s%d, 0x%x" % (82 + jj, (32 + jj) * 8192) for jj in range(8)]
open(OUT, "w").write("\n".join(L) + "\n"); print("wrote", len(L))
```
